```python
import torch

def _softmax(x, axis=-1):
    return torch.softmax(x, dim=axis)
def _gelu(x):
    return torch.nn.functional.gelu(x, approximate="tanh")
def _silu(x):
    return torch.nn.functional.silu(x)
def _sigmoid(x):
    return torch.sigmoid(x)
def _layernorm(x, axis=-1, eps=1e-5):
    m = x.mean(dim=axis, keepdim=True)
    v = x.var(dim=axis, keepdim=True, unbiased=False)
    return (x - m) / torch.sqrt(v + eps)
def _scatter_add(tgt, idx, src, axis=0):
    return tgt.clone().index_add_(axis, idx, src)
def _segment_sum(src, seg, n):
    out = torch.zeros((n,) + src.shape[1:], dtype=src.dtype)
    return out.index_add_(0, seg, src)
def _pad(x, pw):
    flat = tuple(v for pair in reversed(pw) for v in pair)
    return torch.nn.functional.pad(x, flat)

kernel_name = 'parallel_sum__sliding_local_dilated__glu_gated_swiglu__prompt'

def setup_inputs():

    _w = (lambda a: (lambda t: t.to(torch.bfloat16) if t.is_floating_point() else t)(torch.as_tensor(a)))
    def _A_setup():
        B, S, D = 1, 2048, 640
        return {
            "x": _w((lambda *s: torch.randn(*s, dtype=torch.bfloat16) * 0.05)(B, S, D)),
            "wqkv": _w((lambda *s: torch.randn(*s, dtype=torch.bfloat16) * 0.05)(D, 3 * D)),
            "wo": _w((lambda *s: torch.randn(*s, dtype=torch.bfloat16) * 0.05)(D, D)),
        }
    _A_in = _A_setup()

    def _B_setup():
        B, S, D, F = 1, 2048, 640, 1728
        return {
            "x": _w((lambda *s: torch.randn(*s, dtype=torch.bfloat16) * 0.05)(B, S, D)),
            "w1": _w((lambda *s: torch.randn(*s, dtype=torch.bfloat16) * 0.8)(D, F) * (2.0 / D) ** 0.5),
            "w3": _w((lambda *s: torch.randn(*s, dtype=torch.bfloat16) * 0.8)(D, F) * (2.0 / D) ** 0.5),
            "w2": _w((lambda *s: torch.randn(*s, dtype=torch.bfloat16) * 0.8)(F, D) * (2.0 / F) ** 0.5),
        }
    _B_in = _B_setup()

    return {
        "A_x": _A_in["x"],
        "A_wqkv": _A_in["wqkv"],
        "A_wo": _A_in["wo"],
        "B_x": _B_in["x"],
        "B_w1": _B_in["w1"],
        "B_w3": _B_in["w3"],
        "B_w2": _B_in["w2"],
    }

def reference(A_x, A_wqkv, A_wo, B_x, B_w1, B_w3, B_w2):
    def _A_ref(x, wqkv, wo):
        B, S, D = x.shape
        H = 32; Dh = D // H
        W, dil = 8, 2
        qkv = (lambda x, *d: x.permute(*d))((x @ wqkv).reshape(B, S, 3, H, Dh), 2, 0, 3, 1, 4)
        q, k, v = qkv[0], qkv[1], qkv[2]
        scale = Dh ** -0.5
        pos = torch.arange(S)
        off = torch.arange(W) * dil
        idx = pos[:, None] - off[None, :]
        mask = idx >= 0
        idx_c = torch.where(mask, idx, 0).reshape(-1)
        kg = k[:, :, idx_c, :].reshape(B, H, S, W, Dh)
        vg = v[:, :, idx_c, :].reshape(B, H, S, W, Dh)
        logits = torch.einsum("bhsd,bhswd->bhsw", q, kg) * scale
        logits = torch.where(mask[None, None, :, :], logits, -1e9)
        attn = _softmax(logits, axis=-1)
        o = torch.einsum("bhsw,bhswd->bhsd", attn, vg)
        return (lambda x, *d: x.permute(*d))(o, 0, 2, 1, 3).reshape(B, S, D) @ wo

    def _B_ref(x, w1, w3, w2):
        gate = torch.einsum("bsd,df->bsf", x, w1)
        up = torch.einsum("bsd,df->bsf", x, w3)
        h = _silu(gate) * up
        out = torch.einsum("bsf,fd->bsd", h, w2)
        return out

    x = A_x
    xn = _layernorm(x, axis=-1)
    return x + _A_ref(xn, A_wqkv, A_wo) + _B_ref(xn, B_w1, B_w3, B_w2)
```

```python
import re

_REG = re.compile(r"(?<![\w.])([vsa])(?:\[(\d+):(\d+)\]|(\d+))(?![\w])")

def regs_of(op):
    out = set()
    for m in _REG.finditer(op):
        k = m.group(1)
        if m.group(4) is not None:
            out.add(f"{k}{m.group(4)}")
        else:
            for i in range(int(m.group(2)), int(m.group(3)) + 1):
                out.add(f"{k}{i}")
    if re.search(r"\bvcc\b", op): out.add("vcc")
    if re.search(r"\bexec\b", op): out.add("exec")
    if re.search(r"\bm0\b", op): out.add("m0")
    return out

TRANS = ("v_exp_f32", "v_log_f32", "v_rcp_f32", "v_rsq_f32", "v_sqrt_f32", "v_sin_f32", "v_cos_f32")

class Ins:
    __slots__ = ("text", "mn", "ops", "wr", "rd", "kind", "label", "target", "srcc", "srcab", "passes", "data", "lds", "states")
    def __init__(self, text):
        self.text = text
        t = text.split(";")[0].strip()
        self.label = None; self.target = None
        self.wr = set(); self.rd = set(); self.srcc = set(); self.srcab = set(); self.passes = 0
        self.data = set(); self.lds = False; self.states = 1
        if t.endswith(":"):
            self.label = t[:-1]; self.kind = "label"; self.mn = ""; self.states = 0; return
        if t.startswith(".") or not t:
            self.kind = "dir"; self.mn = ""; self.states = 0; return
        parts = t.split(None, 1)
        mn = parts[0]; self.mn = mn
        rest = parts[1] if len(parts) > 1 else ""
        ops = []; cur = ""; d = 0
        for ch in rest:
            if ch == "[": d += 1
            if ch == "]": d -= 1
            if ch == "," and d == 0:
                ops.append(cur.strip()); cur = ""
            else:
                cur += ch
        if cur.strip(): ops.append(cur.strip())
        self.ops = ops
        R = [regs_of(o.split(" ")[0]) if not o.startswith("-") else regs_of(o) for o in ops]
        if mn.startswith("v_mfma"):
            self.kind = "mfma"
            self.wr = R[0]; self.srcab = R[1] | R[2]; self.srcc = R[3]; self.rd = self.srcab | self.srcc
            self.passes = 8 if "32x32x16" in mn else 4
        elif mn.startswith("v_cmp"):
            self.kind = "valu"; self.wr = R[0]; self.rd = set().union(*R[1:])
            if mn.startswith("v_cmpx"): self.wr |= {"exec"}
        elif mn.startswith("v_readfirstlane") or mn.startswith("v_readlane"):
            self.kind = "valu"; self.wr = R[0]; self.rd = set().union(*R[1:])
        elif mn.startswith("v_permlane"):
            self.kind = "valu"; self.wr = R[0] | R[1]; self.rd = R[0] | R[1]
        elif mn.startswith("v_add_co") or mn.startswith("v_addc_co") or mn.startswith("v_sub_co"):
            self.kind = "valu"; self.wr = R[0] | R[1]; self.rd = set().union(*R[2:])
        elif mn.startswith("v_"):
            self.kind = "valu"
            if mn == "v_nop":
                pass
            else:
                self.wr = R[0]; self.rd = set().union(*R[1:]) if len(R) > 1 else set()
                if mn.startswith("v_fmac") or mn.startswith("v_dot2c") or mn.startswith("v_writelane") or "dpp" in t or "row_" in t:
                    self.rd |= R[0]
        elif mn.startswith("buffer_") or mn.startswith("global_"):
            self.kind = "vmem"
            allr = set().union(*[regs_of(o) for o in ops])
            if " lds" in t:
                self.lds = True; self.rd = allr | {"m0"}
            elif "load" in mn:
                self.wr = R[0]; self.rd = set().union(*[regs_of(o) for o in ops[1:]])
            elif "atomic" in mn:
                self.rd = allr
                if "sc0" in t and mn.startswith("buffer_"): self.wr = R[0]
                if "sc0" in t and mn.startswith("global_"): self.wr = R[0]
            elif "store" in mn:
                self.rd = allr
                self.data = R[0] if mn.startswith("buffer_") else R[1]
            else:
                self.rd = allr
        elif mn.startswith("ds_"):
            self.kind = "ds"
            if "read" in mn or "bpermute" in mn or "swizzle" in mn:
                self.wr = R[0]; self.rd = set().union(*[regs_of(o) for o in ops[1:]])
            else:
                self.rd = set().union(*[regs_of(o) for o in ops])
        elif mn.startswith("s_"):
            self.kind = "salu"
            if mn == "s_nop":
                self.states = int(ops[0], 0) + 1
            elif mn.startswith("s_cbranch") or mn == "s_branch":
                self.kind = "branch"; self.target = ops[0]
            elif mn.startswith("s_cmp") or mn in ("s_waitcnt", "s_barrier", "s_endpgm", "s_setprio", "s_sleep"):
                self.rd = set().union(*R) if R else set()
            else:
                self.wr = R[0]; self.rd = set().union(*R[1:]) if len(R) > 1 else set()
                if "saveexec" in mn: self.wr |= {"exec"}
        else:
            raise ValueError("unknown instr " + text)

def need(p, c):
    n = 0
    isv = lambda r: r[0] in "va" and r not in ("vcc",)
    iss = lambda r: (r[0] == "s") or r == "vcc"
    if p.kind == "valu":
        pv = {r for r in p.wr if isv(r)}
        ps = {r for r in p.wr if iss(r)}
        if c.kind == "mfma" and pv & c.rd: n = max(n, 2)
        if c.kind == "mfma" and "exec" in p.wr: n = max(n, 4)
        if c.kind == "vmem" and ps & c.rd: n = max(n, 5)
        if c.kind == "valu":
            if ps & c.rd: n = max(n, 2)
            if (c.mn.startswith("v_readlane") or c.mn.startswith("v_writelane")) and ps & c.rd: n = max(n, 4)
            if (c.mn.startswith("v_readfirstlane") or c.mn.startswith("v_readlane")) and pv & c.rd: n = max(n, 1)
            if c.mn.startswith("v_permlane") and pv & c.rd: n = max(n, 2)
            if ("row_" in c.text or "quad_perm" in c.text or "wave_" in c.text) and pv & c.rd: n = max(n, 2)
            if p.mn.split("_e")[0] in TRANS and c.mn.split("_e")[0] not in TRANS and pv & c.rd: n = max(n, 1)
            if ("op_sel" in p.text and not p.mn.startswith("v_pk")) and pv & (c.rd | c.wr): n = max(n, 1)
            if "exec" in p.wr: n = max(n, 5)
        if c.kind == "salu" and ps & c.rd: n = max(n, 1)
        if p.mn.split("_e")[0] in TRANS and c.kind in ("vmem", "ds") and pv & c.rd: n = max(n, 1)
    if p.kind == "mfma":
        big = {4: (8, 6, 3), 8: (12, 10, 7)}[p.passes]
        if c.kind == "mfma":
            if p.wr & c.srcab: n = max(n, big[0])
            if p.wr & c.srcc and not (p.wr == c.srcc and p.passes == c.passes): n = max(n, big[1])
            if p.wr & c.wr and not (p.wr == c.srcc and p.passes == c.passes): n = max(n, big[0])
        elif c.kind in ("valu", "vmem", "ds"):
            if p.wr & (c.rd | c.wr): n = max(n, big[0])
            if c.kind == "valu" and p.srcc & c.wr: n = max(n, big[2])
            if c.kind in ("vmem", "ds") and p.srcc & c.wr: n = max(n, big[2])
    if p.kind == "salu" and "m0" in p.wr and c.kind == "vmem" and c.lds: n = max(n, 1)
    if p.kind == "vmem" and p.data and ("x4" in p.mn or "x3" in p.mn):
        if p.data & c.wr: n = max(n, 2)
    return n

def fix_hazards(lines):
    ins = [Ins(l) for l in lines]
    total = 0
    def mk():
        labels = {x.label: i for i, x in enumerate(ins) if x.label}
        preds = {}
        for i, x in enumerate(ins):
            if x.kind == "branch" and x.target in labels:
                preds.setdefault(labels[x.target], []).append(i)
        return preds
    preds = mk()
    i = 0
    while i < len(ins):
        c = ins[i]
        if c.kind in ("label", "dir"):
            i += 1; continue
        worst = 0
        stack = [(i - 1, 0)]
        seen = set()
        while stack:
            j, acc = stack.pop()
            while j >= 0 and acc < 20:
                if (j, acc) in seen: break
                seen.add((j, acc))
                p = ins[j]
                if p.kind == "label":
                    for b in preds.get(j, []):
                        stack.append((b, acc))
                    j -= 1
                    if j >= 0 and ins[j].mn in ("s_branch", "s_endpgm"): break
                    continue
                if p.kind == "dir":
                    j -= 1; continue
                if p.mn in ("s_endpgm",): break
                n = need(p, c)
                if n > acc: worst = max(worst, n - acc)
                acc += p.states
                j -= 1
        if worst > 0:
            ins.insert(i, Ins(f"s_nop {worst - 1}   ; hazard"))
            total += 1
            preds = mk()
            i += 1
        i += 1
    return [x.text for x in ins], total

def magic(div, maxval, bits=16):
    m = -(-(1 << bits) // div)
    for x in range(maxval + 1):
        assert (x * m) >> bits == x // div, (div, maxval, bits)
    return m

class Asm:
    def __init__(self):
        self.L = []
        self.uid = 0
    def __call__(self, s):
        for line in s.split("\n"):
            line = line.strip()
            if line: self.L.append(line)
    def label(self, base):
        self.uid += 1
        return f"{base}_{self.uid}"
    def text(self, fix=True):
        lines = self.L
        n = 0
        if fix:
            lines, n = fix_hazards(lines)
        out = []
        for l in lines:
            if l.endswith(":") or l.startswith(".") or l.startswith(";"): out.append(l)
            else: out.append("    " + l)
        return "\n".join(out) + "\n", n

def vr(a, n=1):
    return f"v{a}" if n == 1 else f"v[{a}:{a+n-1}]"
def sr(a, n=1):
    return f"s{a}" if n == 1 else f"s[{a}:{a+n-1}]"
```

```python
import sys, struct
from asmlib import Asm, vr, sr, magic

NAME = "parallel_sum__sliding_local_dilated__glu_gated_swiglu__prompt"
S, D, FF = 2048, 640, 1728
X_BYTES = S * D * 2
WQKV_BYTES = D * 1920 * 2
W1_BYTES = D * FF * 2
WO_BYTES = D * D * 2
W2_BYTES = FF * D * 2
NF = 74
WS_STATS, STATS_BYTES = 0, 32768
WS_W2P, W2P_BYTES = 0x10000, 8 * NF * 5 * 1024
WS_ACT, ACT_BYTES = 0x300000, 32 * NF * 4 * 1024
XBASE, XSLOT = 0, 24576
WBASE, WSLOT, NWS = 73728, 16384, 5
MISC = WBASE + NWS * WSLOT
LOG2E = 1.4426950408889634
def f32(x): return struct.unpack("<I", struct.pack("<f", x))[0]

def srd(a, d, lo, size, add=0):
    if add:
        a(f"s_add_u32 s{d}, s{lo}, {add}")
        a(f"s_addc_u32 s{d+1}, s{lo+1}, 0")
    else:
        a(f"s_mov_b32 s{d}, s{lo}")
        a(f"s_mov_b32 s{d+1}, s{lo+1}")
    a(f"s_mov_b32 s{d+2}, {size}")
    a(f"s_mov_b32 s{d+3}, 0x20000")

def kernargs(a):
    a("s_load_dwordx16 s[4:19], s[0:1], 0")
    a("s_load_dwordx4 s[20:23], s[0:1], 64")

def wave_allsum(a, v, t):
    a(f"v_add_f32_dpp v{v}, v{v}, v{v} quad_perm:[1,0,3,2] row_mask:0xf bank_mask:0xf")
    a(f"v_add_f32_dpp v{v}, v{v}, v{v} quad_perm:[2,3,0,1] row_mask:0xf bank_mask:0xf")
    a(f"v_add_f32_dpp v{v}, v{v}, v{v} row_half_mirror row_mask:0xf bank_mask:0xf")
    a(f"v_add_f32_dpp v{v}, v{v}, v{v} row_mirror row_mask:0xf bank_mask:0xf")
    a(f"v_mov_b32 v{t}, v{v}")
    a(f"v_permlane16_swap_b32 v{v}, v{t}")
    a(f"v_add_f32 v{v}, v{v}, v{t}")
    a(f"v_mov_b32 v{t}, v{v}")
    a(f"v_permlane32_swap_b32 v{v}, v{t}")
    a(f"v_add_f32 v{v}, v{v}, v{t}")

def bf16round(a, v):
    a(f"v_cvt_pk_bf16_f32 v{v}, v{v}, v{v}")
    a(f"v_and_b32 v{v}, 0xffff0000, v{v}")

def header(a, name):
    a(f".globl {name}")
    a(".p2align 8")
    a(f".type {name},@function")
    a(f"{name}:")

def kd(name, vgpr, sgpr=96):
    return f""".amdhsa_kernel {name}
  .amdhsa_next_free_vgpr {vgpr}
  .amdhsa_next_free_sgpr {sgpr}
  .amdhsa_accum_offset {(vgpr + 3) // 4 * 4}
  .amdhsa_group_segment_fixed_size 0
  .amdhsa_kernarg_size 80
  .amdhsa_user_sgpr_count 2
  .amdhsa_user_sgpr_kernarg_segment_ptr 1
  .amdhsa_system_sgpr_workgroup_id_x 1
.end_amdhsa_kernel
"""

def gen_k0(a):
    header(a, "k0_kernel")
    a("s_cmp_ge_u32 s2, 256")
    a("s_cbranch_scc1 K0_END")
    kernargs(a)
    a("v_and_b32 v1, 63, v0")
    a("v_lshrrev_b32 v2, 6, v0")
    a("v_readfirstlane_b32 s40, v2")
    a("v_lshlrev_b32 v3, 4, v1")
    a("v_lshlrev_b32 v4, 2, v1")
    a("s_lshl_b32 s41, s2, 3")
    a("s_add_u32 s41, s41, s40")
    a("s_mul_i32 s42, s41, 1280")
    a("s_waitcnt lgkmcnt(0)")
    srd(a, 24, 4, X_BYTES)
    srd(a, 32, 22, STATS_BYTES, WS_STATS)
    srd(a, 36, 22, W2P_BYTES, WS_W2P)
    a("buffer_load_dwordx4 v[10:13], v3, s[24:27], s42 offen")
    a("buffer_load_dword v14, v4, s[24:27], s42 offen offset:1024")
    a("s_waitcnt vmcnt(0)")
    for i in range(5):
        a(f"v_lshlrev_b32 v{20+2*i}, 16, v{10+i}")
        a(f"v_and_b32 v{21+2*i}, 0xffff0000, v{10+i}")
    a("v_add_f32 v30, v20, v21")
    for i in range(2, 10):
        a(f"v_add_f32 v30, v30, v{20+i}")
    wave_allsum(a, 30, 31)
    a(f"v_mul_f32 v30, {f32(1.0/640):#x}, v30")
    for i in range(10):
        a(f"v_sub_f32 v{20+i}, v{20+i}, v30")
    a("v_mul_f32 v32, v20, v20")
    for i in range(1, 10):
        a(f"v_fmac_f32 v32, v{20+i}, v{20+i}")
    wave_allsum(a, 32, 31)
    a(f"v_mul_f32 v32, {f32(1.0/640):#x}, v32")
    bf16round(a, 30)
    bf16round(a, 32)
    a(f"v_add_f32 v32, {f32(1e-5):#x}, v32")
    bf16round(a, 32)
    a("v_sqrt_f32 v32, v32")
    bf16round(a, 32)
    a("v_rcp_f32 v31, v32")
    a("s_lshl_b32 s43, s41, 3")
    a("s_and_b32 s44, s41, 0xfffffff0")
    a("s_and_b32 s45, s41, 1")
    a("s_lshl_b32 s45, s45, 3")
    a("s_add_u32 s44, s44, s45")
    a("s_and_b32 s45, s41, 15")
    a("s_lshr_b32 s45, s45, 1")
    a("s_add_u32 s44, s44, s45")
    a("s_lshl_b32 s44, s44, 2")
    a("s_add_u32 s44, s44, 16384")
    a("s_add_u32 s45, s44, 8192")
    a("s_mov_b64 exec, 1")
    a("buffer_store_dwordx2 v[30:31], off, s[32:35], s43")
    a("buffer_store_dword v30, off, s[32:35], s44")
    a("buffer_store_dword v31, off, s[32:35], s45")
    a("s_mov_b64 exec, -1")
    a("s_cmp_ge_u32 s2, 148")
    a("s_cbranch_scc1 K0_END")
    a("s_lshr_b32 s46, s2, 1")
    a("s_and_b32 s47, s2, 1")
    a("s_sub_u32 s48, s46, 20")
    a("s_lshl_b32 s48, s48, 5")
    a("s_mov_b32 s49, 16")
    a("s_mov_b32 s50, 4")
    srd(a, 28, 16, W2_BYTES)
    a("s_cmp_ge_u32 s46, 20")
    a("s_cbranch_scc1 K0_SEL")
    srd(a, 28, 8, WO_BYTES)
    a("s_mul_i32 s48, s46, 40")
    a("s_mov_b32 s49, 20")
    a("s_cmp_lt_u32 s46, 16")
    a("s_cbranch_scc1 K0_SEL")
    a("s_sub_u32 s48, s46, 16")
    a("s_mul_i32 s48, s48, 160")
    a("s_add_u32 s48, s48, 16")
    a("s_mov_b32 s50, 40")
    a("K0_SEL:")
    a("s_mul_i32 s51, s47, 640")
    a("s_mul_i32 s52, s48, 1280")
    a("s_add_u32 s51, s51, s52")
    for q in range(3):
        if q == 2:
            a("s_cmp_ge_u32 s40, 4")
            a("s_cbranch_scc1 K0_DMADONE")
        a(f"v_add_u32 v5, {512*q}, v0")
        a(f"v_mul_u32_u24 v6, {magic(40, 1535)}, v5")
        a("v_lshrrev_b32 v6, 16, v6")
        a("v_mul_u32_u24 v7, 40, v6")
        a("v_sub_u32 v7, v5, v7")
        a("v_lshrrev_b32 v8, 3, v6")
        a("v_mul_u32_u24 v8, s50, v8")
        a("v_bfe_u32 v9, v6, 2, 1")
        a("v_mul_u32_u24 v9, s49, v9")
        a("v_and_b32 v6, 3, v6")
        a("v_add3_u32 v6, v6, v8, v9")
        a("v_mul_u32_u24 v6, 1280, v6")
        a("v_lshl_add_u32 v6, v7, 4, v6")
        a("s_lshl_b32 s53, s40, 10")
        a(f"s_add_u32 m0, s53, {8192*q}")
        a("buffer_load_dwordx4 v6, s[28:31], s51 offen lds")
    a("K0_DMADONE:")
    a("s_waitcnt vmcnt(0)")
    a("s_barrier")
    a("v_lshrrev_b32 v5, 4, v1")
    a("v_bfe_u32 v6, v1, 2, 2")
    a("v_lshl_add_u32 v5, v5, 3, v6")
    a("v_mul_u32_u24 v5, 640, v5")
    a("v_and_b32 v6, 3, v1")
    for q in range(3):
        if q == 2:
            a("s_cmp_ge_u32 s40, 4")
            a("s_cbranch_scc1 K0_END")
        a(f"s_add_u32 s53, s40, {8*q}")
        a(f"s_mul_i32 s54, s53, {magic(5, 23)}")
        a("s_lshr_b32 s54, s54, 16")
        a("s_mul_i32 s55, s54, 5")
        a("s_sub_u32 s55, s53, s55")
        a("s_lshr_b32 s56, s55, 1")
        a("s_lshl_b32 s56, s56, 6")
        a("s_and_b32 s57, s55, 1")
        a("s_lshl_b32 s57, s57, 3")
        a("s_add_u32 s56, s56, s57")
        a("s_mul_i32 s57, s54, 160")
        a("s_add_u32 s56, s56, s57")
        a("s_cmp_eq_u32 s55, 4")
        a("s_cselect_b32 s57, 3, 4")
        a("v_lshlrev_b32 v7, s57, v6")
        a("v_add3_u32 v7, v7, v5, s56")
        a("ds_read_b64_tr_b16 v[10:11], v7")
        a("ds_read_b64_tr_b16 v[12:13], v7 offset:2560")
        a("s_lshl_b32 s57, s47, 2")
        a("s_add_u32 s57, s57, s54")
        a(f"s_mul_i32 s57, s57, {NF}")
        a("s_add_u32 s57, s57, s46")
        a("s_mul_i32 s57, s57, 5")
        a("s_add_u32 s57, s57, s55")
        a("s_lshl_b32 s57, s57, 10")
        a("s_waitcnt lgkmcnt(0)")
        a("buffer_store_dwordx4 v[10:13], v3, s[36:39], s57 offen")
    a("K0_END:")
    a("s_endpgm")

ACC = 0
FR = 96
V_XV = 184
V_WV = 187
V_XB = 189
V_WB = 191
V_XA = 194
V_WA = 195
V_LANE = 198
V_ST = 200
V_T = 232

def dma_w(a, piece):
    a(f"s_add_u32 m0, s50, s{47+piece}")
    a("s_nop 0")
    a(f"buffer_load_dwordx4 v{V_WV+piece}, s[28:31], s44 offen lds")

def dma_x(a, q, slot_sgpr):
    a(f"s_add_u32 m0, s{slot_sgpr}, s{58+q}")
    if q == 0:
        a("s_mov_b64 exec, s[56:57]")
    else:
        a("s_nop 0")
    a(f"buffer_load_dwordx4 v{V_XV+q}, s[24:27], s46 offen lds")
    if q == 0:
        a("s_mov_b64 exec, -1")

def k1_loop(a, typ):
    if typ == "g":
        NR, NC, nwa = 6, 4, 2
    else:
        NR, NC, nwa = 3, 8, 3
    def xf(st, rt): return FR + st * (NR + NC) * 4 + rt * 4
    def wf(st, ct): return FR + st * (NR + NC) * 4 + NR * 4 + ct * 4
    def reads(st):
        L = []
        xr = [f"ds_read_b128 {vr(xf(st, rt), 4)}, v{V_XA} offset:{rt*2048}" for rt in range(NR)]
        wr = []
        for ct in range(NC):
            for p in range(2):
                if typ == "g":
                    mat, tt = ct // 2, ct % 2
                    wr.append(f"ds_read_b64_tr_b16 {vr(wf(st, ct) + 2*p, 2)}, v{V_WA+tt} offset:{mat*8192 + p*2048}")
                else:
                    if ct in (0, 1, 2, 3): reg, off = 0, (ct // 2) * 160 + (ct % 2) * 40
                    elif ct == 4: reg, off = 1, 0
                    elif ct in (5, 6): reg, off = 0, 320 + (ct - 5) * 40
                    else: reg, off = 2, 0
                    wr.append(f"ds_read_b64_tr_b16 {vr(wf(st, ct) + 2*p, 2)}, v{V_WA+reg} offset:{off + p*7680}")
        return xr + wr
    def mfmas(st):
        L = []
        for rt in range(NR):
            for ct in range(NC):
                acc = vr(ACC + (rt * NC + ct) * 4, 4)
                A, B = vr(wf(st, ct), 4), vr(xf(st, rt), 4)
                if typ == "q" and ct >= 5: A, B = B, A
                L.append(f"v_mfma_f32_16x16x32_bf16 {acc}, {A}, {B}, {acc}")
        return L
    def addr_update(h, xslot):
        L = [f"v_add_u32 v{V_XA}, s{xslot}, v{V_XB+h}"]
        for i in range(nwa):
            L.append(f"v_add_u32 v{V_WA+i}, s51, v{V_WB+i}")
        return L
    def adv_w():
        return ["s_mov_b32 s50, s51", f"s_add_u32 s51, s51, {WSLOT}", f"s_cmp_eq_u32 s51, {NWS*WSLOT}", "s_cselect_b32 s51, 0, s51",
                "s_add_u32 s44, s44, s45"]
    class Cap:
        def __init__(s): s.L = []
        def __call__(s, x): s.L.append(x)
    def cap(f, *args):
        c = Cap(); f(c, *args); return "\n".join(c.L)

    a("s_waitcnt vmcnt(13) lgkmcnt(0)")
    a("s_barrier")
    a("s_mov_b32 s51, 0")
    for x in addr_update(0, 53): a(x)
    for x in reads(0): a(x)
    a("s_mov_b32 s50, 0")
    a(f"s_mov_b32 s51, {WSLOT}")
    for x in addr_update(1, 53): a(x)
    a("s_mov_b32 s62, 0")
    lab = f"K1_LOOP_{typ}"
    a(f"{lab}:")
    for half in range(2):
        a(f"s_waitcnt vmcnt({11 if half == 0 else 9}) lgkmcnt(0)")
        a("s_barrier")
        others = reads(1 - half)
        if half == 0:
            others += [cap(dma_x, 2, 55), cap(dma_w, 0), cap(dma_w, 1)]
            tail = ["s_add_u32 s46, s46, 128", "s_cmp_ge_u32 s62, 7", "s_cselect_b32 s26, 0, s26"] + adv_w() + addr_update(0, 54)
        else:
            others += [cap(dma_w, 0), cap(dma_w, 1), cap(dma_x, 0, 53), cap(dma_x, 1, 53)]
            tail = ["s_mov_b32 s63, s53", "s_mov_b32 s53, s54", "s_mov_b32 s54, s55", "s_mov_b32 s55, s63"] + adv_w() + addr_update(1, 53)
            tail += ["s_add_u32 s62, s62, 1", "s_cmp_lt_u32 s62, 10"]
        M = mfmas(half)
        n = len(M)
        for i, m in enumerate(M):
            if i == n - 1:
                while others: a(others.pop(0))
                for t in tail: a(t)
            a(m)
            if others: a(others.pop(0))
    a(f"s_cbranch_scc1 {lab}")

def k1_common_prologue(a, typ):
    L = V_LANE; T = V_T
    a(f"v_lshrrev_b32 v{T}, 3, v{L}")
    a(f"v_and_b32 v{T+1}, 7, v{L}")
    a(f"v_lshrrev_b32 v{T+2}, 1, v{T}")
    a("s_and_b32 s63, s40, 1")
    a("s_lshl_b32 s64, s63, 2")
    a(f"v_or_b32 v{T+2}, s64, v{T+2}")
    a(f"v_xor_b32 v{T+1}, v{T+1}, v{T+2}")
    if typ == "g":
        a("s_mul_i32 s64, s41, 188")
        a("s_lshl_b32 s65, s40, 3")
        a("s_add_u32 s64, s64, s65")
        a("s_sub_u32 s64, s64, 4")
        a(f"v_add_u32 v{T}, s64, v{T}")
    else:
        a("s_mul_i32 s64, s41, 176")
        a("s_lshr_b32 s65, s40, 1")
        a("s_lshl_b32 s66, s65, 4")
        a("s_add_u32 s64, s64, s66")
        a("s_and_b32 s65, s65, 1")
        a("s_xor_b32 s65, s65, s63")
        a("s_add_u32 s64, s64, s65")
        a("s_sub_u32 s64, s64, 16")
        a(f"v_lshl_add_u32 v{T}, v{T}, 1, s64")
    a(f"v_mul_i32_i24 v{T}, 1280, v{T}")
    a(f"v_lshl_add_u32 v{V_XV}, v{T+1}, 4, v{T}")
    a(f"v_add_u32 v{V_XV+1}, {64*1280}, v{V_XV}")
    a(f"v_add_u32 v{V_XV+2}, {128*1280}, v{V_XV}")
    a("s_lshl_b32 s58, s40, 10")
    a(f"s_add_u32 s58, s58, {XBASE}")
    a("s_add_u32 s59, s58, 8192")
    a("s_add_u32 s60, s58, 16384")
    a("s_cmp_eq_u32 s40, 0")
    a("s_cselect_b32 s56, 0xffffff00, -1")
    a("s_mov_b32 s57, -1")
    a("s_mov_b32 s53, 0")
    a(f"s_mov_b32 s54, {XSLOT}")
    a(f"s_mov_b32 s55, {2*XSLOT}")
    a("s_mov_b32 s44, 0")
    a("s_mov_b32 s46, 0")
    def nextw(slot):
        a(f"s_mov_b32 s50, {slot*WSLOT}")
        dma_w(a, 0); dma_w(a, 1)
        a("s_add_u32 s44, s44, s45")
    nextw(0); dma_x(a, 0, 53); dma_x(a, 1, 53)
    dma_x(a, 2, 53); nextw(1)
    a("s_mov_b32 s46, 128")
    nextw(2); dma_x(a, 0, 54); dma_x(a, 1, 54)
    dma_x(a, 2, 54); nextw(3)
    a("s_mov_b32 s46, 256")
    nextw(4); dma_x(a, 0, 55); dma_x(a, 1, 55)
    a(f"v_mov_b32 v{T}, 0x3f803f80")
    a(f"v_mov_b32 v{T+1}, 0x3f803f80")
    a(f"v_mov_b32 v{T+2}, 0x3f803f80")
    a(f"v_mov_b32 v{T+3}, 0x3f803f80")
    a(f"v_lshlrev_b32 v{T+4}, 4, v{L}")
    a("s_mov_b64 exec, 0xff")
    for sl in range(3):
        a(f"ds_write_b128 v{T+4}, {vr(T,4)} offset:{XBASE + sl*XSLOT}")
    a("s_mov_b64 exec, -1")
    a(f"v_and_b32 v{T}, 15, v{L}")
    a(f"v_lshrrev_b32 v{T+1}, 4, v{L}")
    a(f"v_lshrrev_b32 v{T+2}, 1, v{T}")
    a(f"v_xor_b32 v{T+1}, v{T+1}, v{T+2}")
    a(f"v_lshlrev_b32 v{T+1}, 4, v{T+1}")
    a(f"v_lshl_add_u32 v{T}, v{T}, 7, v{T+1}")
    if typ == "g":
        a("s_lshr_b32 s63, s40, 2")
        a(f"s_mul_i32 s63, s63, {6*2048}")
    else:
        a("s_and_b32 s63, s40, 3")
        a(f"s_mul_i32 s63, s63, {3*2048}")
    a(f"v_add_u32 v{V_XB}, s63, v{T}")
    a(f"v_xor_b32 v{V_XB+1}, 64, v{V_XB}")
    for i in range(96):
        a(f"v_mov_b32 v{ACC+i}, 0")

def gen_k1(a):
    L = V_LANE; T = V_T
    header(a, "k1_kernel")
    a("s_cmp_ge_u32 s2, 256")
    a("s_cbranch_scc1 K1_END")
    kernargs(a)
    a(f"v_and_b32 v{L}, 63, v0")
    a("v_lshrrev_b32 v1, 6, v0")
    a("v_readfirstlane_b32 s40, v1")
    a("s_and_b32 s63, s2, 7")
    a("s_lshr_b32 s64, s2, 3")
    a("s_cmp_lt_u32 s64, 12")
    a("s_cbranch_scc1 K1_QKV")
    a("s_mul_i32 s65, s63, 20")
    a("s_add_u32 s65, s65, s64")
    a("s_sub_u32 s65, s65, 12")
    a("s_cmp_ge_u32 s65, 154")
    a("s_cbranch_scc1 K1_END")
    a(f"s_mul_i32 s42, s65, {magic(6, 160)}")
    a("s_lshr_b32 s42, s42, 16")
    a("s_mul_i32 s41, s42, 6")
    a("s_sub_u32 s41, s65, s41")
    a("s_cmp_lt_u32 s65, 84")
    a("s_cbranch_scc1 K1_G_DEC")
    a("s_sub_u32 s65, s65, 84")
    a(f"s_mul_i32 s42, s65, {magic(5, 160)}")
    a("s_lshr_b32 s42, s42, 16")
    a("s_mul_i32 s41, s42, 5")
    a("s_sub_u32 s41, s65, s41")
    a("s_add_u32 s41, s41, 6")
    a("K1_G_DEC:")
    a(f"v_lshrrev_b32 v{T}, 3, v{L}")
    a(f"v_and_b32 v{T+1}, 7, v{L}")
    a(f"v_and_b32 v{T+2}, 6, v{T}")
    a(f"v_xor_b32 v{T+1}, v{T+1}, v{T+2}")
    a(f"v_and_b32 v{T+2}, 4, v{T}")
    a(f"v_add_u32 v{T}, v{T}, v{T+2}")
    a("s_and_b32 s63, s40, 1")
    a("s_lshl_b32 s64, s63, 4")
    a(f"v_add_u32 v{T}, s64, v{T}")
    a(f"v_mul_u32_u24 v{T}, 3456, v{T}")
    a(f"v_lshl_add_u32 v{T}, v{T+1}, 4, v{T}")
    a("s_bfe_u32 s64, s40, 0x10001")
    a("s_lshl_b32 s65, s42, 8")
    a("s_lshl_b32 s66, s64, 7")
    a("s_add_u32 s65, s65, s66")
    a(f"v_add_u32 v{V_WV}, s65, v{T}")
    a(f"v_add_u32 v{V_WV+1}, {4*3456}, v{V_WV}")
    a("s_lshr_b32 s66, s40, 2")
    a("s_lshl_b32 s47, s66, 13")
    a("s_lshl_b32 s65, s64, 12")
    a("s_add_u32 s47, s47, s65")
    a("s_lshl_b32 s65, s63, 10")
    a("s_add_u32 s47, s47, s65")
    a(f"s_add_u32 s47, s47, {WBASE}")
    a("s_add_u32 s48, s47, 2048")
    a(f"s_mov_b32 s45, {32*3456}")
    a("s_waitcnt lgkmcnt(0)")
    srd(a, 24, 4, X_BYTES)
    a("s_cmp_eq_u32 s66, 0")
    a("s_cselect_b32 s28, s12, s14")
    a("s_cselect_b32 s29, s13, s15")
    a(f"s_mov_b32 s30, {W1_BYTES}")
    a("s_mov_b32 s31, 0x20000")
    k1_common_prologue(a, "g")
    srd(a, 32, 22, STATS_BYTES, WS_STATS)
    srd(a, 36, 22, ACT_BYTES, WS_ACT)
    a(f"v_bfe_u32 v{T}, v{L}, 2, 3")
    a(f"v_lshrrev_b32 v{T+1}, 5, v{L}")
    a(f"v_lshlrev_b32 v{T+1}, 10, v{T+1}")
    a(f"v_lshl_add_u32 v{T+1}, v{T}, 7, v{T+1}")
    a(f"v_and_b32 v{T+2}, 3, v{L}")
    a(f"v_lshl_add_u32 v{T+1}, v{T+2}, 3, v{T+1}")
    a(f"v_lshrrev_b32 v{T}, 1, v{T}")
    a("s_and_b32 s63, s40, 1")
    a("s_lshl_b32 s63, s63, 1")
    a(f"v_xor_b32 v{T}, s63, v{T}")
    a(f"v_lshl_add_u32 v{T+1}, v{T}, 5, v{T+1}")
    a("s_bfe_u32 s64, s40, 0x10001")
    a("s_lshl_b32 s64, s64, 12")
    a(f"s_add_u32 s64, s64, {WBASE}")
    a(f"v_add_u32 v{V_WB}, s64, v{T+1}")
    a(f"v_xor_b32 v{V_WB+1}, 32, v{V_WB}")
    k1_loop(a, "g")
    a(f"v_and_b32 v{T}, 15, v{L}")
    a("s_lshr_b32 s63, s40, 2")
    a("s_mul_i32 s63, s63, 96")
    a("s_mul_i32 s64, s41, 188")
    a("s_sub_u32 s64, s64, 4")
    a("s_add_u32 s64, s64, s63")
    a(f"v_add_u32 v{T+1}, s64, v{T}")
    a(f"v_lshlrev_b32 v{T+2}, 3, v{T+1}")
    for rt in range(6):
        a(f"v_add_u32 v{T+3}, {16*rt}, v{T+1}")
        a(f"v_cmp_gt_u32 vcc, 2048, v{T+3}")
        a(f"v_lshlrev_b32 v{T+3}, 3, v{T+3}")
        a(f"v_mov_b32 v{T+4}, 0x80000000")
        a(f"v_cndmask_b32 v{T+3}, v{T+4}, v{T+3}, vcc")
        a(f"buffer_load_dwordx2 {vr(V_ST+2*rt,2)}, v{T+3}, s[32:35], 0 offen")
    a("s_and_b32 s65, s40, 3")
    a("s_lshl_b32 s65, s65, 8")
    a(f"s_add_u32 s65, s65, {MISC}")
    a(f"v_and_b32 v{T+5}, 48, v{L}")
    a(f"v_add_u32 v{T+5}, s65, v{T+5}")
    a("s_cmp_ge_u32 s40, 4")
    a("s_cbranch_scc1 K1_G_NOCS")
    a("s_mov_b32 s66, 0x00010001")
    a("s_mov_b32 s67, 0x00010001")
    a("s_mov_b64 exec, s[66:67]")
    for ct in range(4):
        a(f"ds_write_b128 v{T+5}, {vr(ACC+ct*4,4)} offset:{ct*64}")
    a("s_mov_b64 exec, -1")
    a("K1_G_NOCS:")
    a("s_waitcnt lgkmcnt(0)")
    a("s_barrier")
    CS = FR
    for ct in range(4):
        a(f"ds_read_b128 {vr(CS+ct*4,4)}, v{T+5} offset:{ct*64}")
    a("s_lshl_b32 s65, s42, 2")
    a("s_and_b32 s66, s40, 3")
    a("s_add_u32 s65, s65, s66")
    a("s_cmp_ge_u32 s65, 54")
    a("s_cbranch_scc1 K1_END")
    a("s_add_u32 s65, s65, 20")
    a("s_lshl_b32 s65, s65, 12")
    SO = FR + 16
    a(f"v_and_b32 v{T+6}, 48, v{L}")
    a(f"v_add_u32 v{T+7}, s63, v{T}")
    a(f"s_mov_b32 s66, {NF*4096}")
    for rt in range(6):
        a(f"v_add_u32 v{T+3}, {16*rt}, v{T+1}")
        a(f"v_lshrrev_b32 v{T+4}, 6, v{T+3}")
        a(f"v_mul_lo_u32 v{T+4}, v{T+4}, s66")
        a(f"v_bfe_u32 v{T+8}, v{T+3}, 4, 2")
        a(f"v_lshl_add_u32 v{T+4}, v{T+8}, 10, v{T+4}")
        a(f"v_and_or_b32 v{T+8}, v{T+3}, 15, v{T+6}")
        a(f"v_lshl_add_u32 v{T+4}, v{T+8}, 4, v{T+4}")
        a(f"v_cmp_gt_u32 vcc, 2048, v{T+3}")
        a(f"v_mov_b32 v{T+8}, 0x80000000")
        a(f"v_cndmask_b32 v{SO+rt}, v{T+8}, v{T+4}, vcc")
        if rt == 0:
            a(f"v_cmp_lt_u32 vcc, 3, v{T+7}")
            a(f"v_cndmask_b32 v{SO}, v{T+8}, v{SO}, vcc")
    a("s_waitcnt vmcnt(0) lgkmcnt(0)")
    CC = FR + 24
    for rt in range(6):
        a(f"v_mul_f32 v{CC+2*rt+1}, v{V_ST+2*rt+1}, v{V_ST+2*rt+1}")
        a(f"v_mul_f32 v{CC+2*rt}, {f32(-LOG2E):#x}, v{V_ST+2*rt+1}")
        a(f"v_rcp_f32 v{CC+2*rt+1}, v{CC+2*rt+1}")
    TT = FR + 40
    for rt in range(6):
        st = vr(V_ST + 2*rt, 2); cc = vr(CC + 2*rt, 2)
        o = TT + 16 + (rt % 2) * 4
        prs = [(tt, hf) for tt in range(2) for hf in range(2)]
        def G(tt, hf): return ACC + (rt*4 + tt)*4 + 2*hf
        def U(tt, hf): return ACC + (rt*4 + 2 + tt)*4 + 2*hf
        for i, (tt, hf) in enumerate(prs):
            a(f"v_pk_fma_f32 {vr(G(tt,hf),2)}, {st}, {vr(CS+tt*4+2*hf,2)}, {vr(G(tt,hf),2)} op_sel_hi:[0,1,1] neg_lo:[1,0,0] neg_hi:[1,0,0]")
        for i, (tt, hf) in enumerate(prs):
            a(f"v_pk_mul_f32 {vr(TT+2*i,2)}, {vr(G(tt,hf),2)}, {cc} op_sel_hi:[1,0]")
        for i, (tt, hf) in enumerate(prs):
            a(f"v_exp_f32 v{TT+2*i}, v{TT+2*i}")
            a(f"v_pk_fma_f32 {vr(U(tt,hf),2)}, {st}, {vr(CS+8+tt*4+2*hf,2)}, {vr(U(tt,hf),2)} op_sel_hi:[0,1,1] neg_lo:[1,0,0] neg_hi:[1,0,0]")
            a(f"v_exp_f32 v{TT+2*i+1}, v{TT+2*i+1}")
            a(f"v_pk_mul_f32 {vr(U(tt,hf),2)}, {vr(U(tt,hf),2)}, {vr(G(tt,hf),2)}")
        for i, (tt, hf) in enumerate(prs):
            a(f"v_pk_fma_f32 {vr(TT+2*i,2)}, {vr(TT+2*i,2)}, {cc}, {cc} op_sel:[0,1,1] op_sel_hi:[1,1,1]")
        for i in range(8):
            a(f"v_rcp_f32 v{TT+i}, v{TT+i}")
        for i, (tt, hf) in enumerate(prs):
            a(f"v_pk_mul_f32 {vr(U(tt,hf),2)}, {vr(U(tt,hf),2)}, {vr(TT+2*i,2)}")
        for i, (tt, hf) in enumerate(prs):
            a(f"v_cvt_pk_bf16_f32 v{o+i}, v{U(tt,hf)}, v{U(tt,hf)+1}")
        a(f"buffer_store_dwordx4 {vr(o,4)}, v{SO+rt}, s[36:39], s65 offen")
    a("s_endpgm")

    a("K1_QKV:")
    a("s_cmp_ge_u32 s64, 6")
    a("s_cselect_b32 s65, 1, 0")
    a("s_and_b32 s66, s63, 3")
    a("s_lshl_b32 s42, s66, 1")
    a("s_add_u32 s42, s42, s65")
    a("s_mul_i32 s65, s65, 6")
    a("s_sub_u32 s41, s64, s65")
    a("s_lshr_b32 s66, s63, 2")
    a("s_mul_i32 s66, s66, 6")
    a("s_add_u32 s41, s41, s66")
    a("s_mul_i32 s65, s42, 160")
    for d in range(2):
        a(f"v_add_u32 v{T}, {512*d}, v0")
        a(f"v_mul_u32_u24 v{T+1}, {magic(30, 1023)}, v{T}")
        a(f"v_lshrrev_b32 v{T+1}, 16, v{T+1}")
        a(f"v_mul_u32_u24 v{T+2}, 30, v{T+1}")
        a(f"v_sub_u32 v{T+2}, v{T}, v{T+2}")
        a(f"v_mul_u32_u24 v{T+3}, {magic(10, 29)}, v{T+2}")
        a(f"v_lshrrev_b32 v{T+3}, 16, v{T+3}")
        a(f"v_mul_u32_u24 v{T+4}, {1280-160}, v{T+3}")
        a(f"v_lshl_add_u32 v{T+4}, v{T+2}, 4, v{T+4}")
        a(f"v_and_b32 v{T+2}, 3, v{T+1}")
        a(f"v_and_b32 v{T+3}, 12, v{T+1}")
        a(f"v_lshl_add_u32 v{T+2}, v{T+3}, 1, v{T+2}")
        a(f"v_bfe_u32 v{T+3}, v{T+1}, 4, 1")
        a(f"v_lshl_add_u32 v{T+2}, v{T+3}, 2, v{T+2}")
        a(f"v_mul_u32_u24 v{T+2}, 3840, v{T+2}")
        a(f"v_add3_u32 v{V_WV+d}, v{T+2}, v{T+4}, s65")
        if d == 1:
            a(f"v_cmp_gt_u32 vcc, 32, v{T+1}")
            a(f"v_mov_b32 v{T+2}, 0x80000000")
            a(f"v_cndmask_b32 v{V_WV+1}, v{T+2}, v{V_WV+1}, vcc")
    a("s_lshl_b32 s47, s40, 10")
    a(f"s_add_u32 s47, s47, {WBASE}")
    a("s_add_u32 s48, s47, 8192")
    a(f"s_mov_b32 s45, {32*3840}")
    a("s_waitcnt lgkmcnt(0)")
    srd(a, 24, 4, X_BYTES)
    srd(a, 28, 6, WQKV_BYTES)
    k1_common_prologue(a, "q")
    srd(a, 32, 22, STATS_BYTES, WS_STATS)
    srd(a, 36, 22, ACT_BYTES, WS_ACT)
    a(f"v_lshrrev_b32 v{T}, 2, v{L}")
    a(f"v_mul_u32_u24 v{T}, 480, v{T}")
    a("s_lshr_b32 s63, s40, 2")
    a("s_mul_i32 s63, s63, 80")
    a(f"s_add_u32 s63, s63, {WBASE}")
    a(f"v_add_u32 v{T}, s63, v{T}")
    a(f"v_and_b32 v{T+1}, 3, v{L}")
    a(f"v_lshl_add_u32 v{V_WB}, v{T+1}, 3, v{T}")
    a(f"v_and_b32 v{T+2}, 1, v{L}")
    a(f"v_mul_u32_u24 v{T+2}, 40, v{T+2}")
    a(f"v_add3_u32 v{T+2}, v{T+2}, v{T}, 32")
    a(f"v_add_u32 v{V_WB+2}, 320, v{T+2}")
    a(f"v_bfe_u32 v{T+1}, v{L}, 1, 1")
    a(f"v_mul_u32_u24 v{T+1}, 160, v{T+1}")
    a(f"v_add_u32 v{V_WB+1}, v{T+1}, v{T+2}")
    k1_loop(a, "q")
    a("s_and_b32 s68, s40, 3")
    a("s_lshr_b32 s69, s40, 2")
    a("s_mul_i32 s70, s41, 11")
    a("s_mul_i32 s63, s68, 3")
    a("s_add_u32 s70, s70, s63")
    a("s_sub_u32 s70, s70, 1")
    a("s_add_u32 s71, s70, 1")
    a("s_add_u32 s72, s70, 2")
    MS = T + 0
    a(f"v_and_b32 v{T+2}, 7, v{L}")
    a(f"v_bfe_u32 v{T+3}, v{L}, 3, 1")
    a("s_and_b32 s63, s68, 1")
    a(f"v_xor_b32 v{T+3}, s63, v{T+3}")
    a(f"v_lshl_add_u32 v{MS}, v{T+2}, 1, v{T+3}")
    a(f"v_xor_b32 v{MS+1}, 1, v{MS}")
    a(f"v_lshrrev_b32 v{T+2}, 5, v{L}")
    a(f"v_xor_b32 v{T+2}, s63, v{T+2}")
    a(f"v_lshlrev_b32 v{T+2}, 5, v{T+2}")
    a(f"v_and_or_b32 v{T+2}, v{L}, 16, v{T+2}")
    a(f"v_xor_b32 v{T+3}, 32, v{T+2}")
    a(f"v_lshlrev_b32 v{T+4}, 3, v{MS}")
    a(f"v_lshlrev_b32 v{T+5}, 3, v{MS+1}")
    ST2 = V_ST
    MP = V_ST + 8
    RP = V_ST + 20
    for rt in range(3):
        a(f"s_cmp_lt_u32 s{70+rt}, 128")
        a(f"s_cselect_b32 s63, s{70+rt}, 0x1000")
        a("s_lshl_b32 s64, s63, 7")
        a("s_lshl_b32 s65, s63, 6")
        a("s_add_u32 s65, s65, 16384")
        a("s_add_u32 s66, s65, 8192")
        a(f"buffer_load_dwordx2 {vr(ST2+2*rt,2)}, v{T+4+(rt%2)}, s[32:35], s64 offen")
        a(f"buffer_load_dwordx4 {vr(MP+4*rt,4)}, v{T+2+(rt%2)}, s[32:35], s65 offen")
        a(f"buffer_load_dwordx4 {vr(RP+4*rt,4)}, v{T+2+(rt%2)}, s[32:35], s66 offen")
    a("s_lshl_b32 s63, s69, 9")
    a(f"s_add_u32 s63, s63, {MISC}")
    a(f"v_and_b32 v{T+6}, 48, v{L}")
    a(f"v_add_u32 v{T+6}, s63, v{T+6}")
    a(f"v_and_b32 v{T+7}, 15, v{L}")
    a(f"v_lshl_add_u32 v{T+7}, v{T+7}, 2, s63")
    a("s_cmp_lg_u32 s68, 0")
    a("s_cbranch_scc1 K1_Q_NOCS")
    a("s_mov_b32 s66, 0x00010001")
    a("s_mov_b32 s67, 0x00010001")
    a("s_mov_b64 exec, s[66:67]")
    for ct in range(5):
        a(f"ds_write_b128 v{T+6}, {vr(ACC+ct*4,4)} offset:{ct*64}")
    a("s_mov_b64 exec, 0xffff")
    for ct in range(5, 8):
        a(f"ds_write_b32 v{T+7}, v{ACC+ct*4} offset:{ct*64}")
    a("s_mov_b64 exec, -1")
    a("K1_Q_NOCS:")
    a("s_waitcnt vmcnt(0) lgkmcnt(0)")
    a("s_barrier")
    KP = FR
    VA = FR + 24
    VB = FR + 32
    VR = FR + 40
    QP = FR + 48
    B1 = FR + 72; B2 = FR + 76; ONE = FR + 80
    CSV = FR + 84
    CS = V_XV
    def cs(ct): return (T + 8 + 4*ct) if ct < 4 else V_XV
    for ct in range(5):
        a(f"ds_read_b128 {vr(cs(ct),4)}, v{T+6} offset:{ct*64}")
    for ct in range(5, 8):
        a(f"ds_read_b32 v{CSV+ct-5}, v{T+7} offset:{ct*64}")
    a("s_mov_b32 s74, 0x0000ffff"); a("s_mov_b32 s75, 0")
    a("s_mov_b32 s76, 0xffff0000"); a("s_mov_b32 s77, 0")
    a("s_mov_b32 s78, 0x00ff00ff"); a("s_mov_b32 s79, 0xff00ff00")
    a("s_mov_b32 s80, 0xff00ff00"); a("s_mov_b32 s81, 0x00ff00ff")
    cexp = (20 ** -0.5) * LOG2E
    a(f"s_mov_b32 s82, {f32(cexp):#x}"); a(f"s_mov_b32 s83, {f32(cexp):#x}")
    X0 = V_XV + 4
    a(f"v_and_b32 v{X0}, 7, v{L}")
    a(f"v_bfe_u32 v{X0+1}, v{L}, 4, 1")
    a(f"v_lshlrev_b32 v{X0+1}, 2, v{X0+1}")
    a(f"v_mov_b32 v{X0+2}, 0xff800000")
    for r in range(4):
        a(f"v_add_u32 v{X0+3}, {r}, v{X0+1}")
        a(f"v_cmp_le_u32 vcc, v{X0+3}, v{X0}")
        a("s_and_b64 s[84:85], vcc, s[78:79]")
        a("s_andn2_b64 s[86:87], s[80:81], vcc")
        a(f"v_cndmask_b32 v{B1+r}, v{X0+2}, 0, s[84:85]")
        a(f"v_cndmask_b32 v{B2+r}, v{X0+2}, 0, s[86:87]")
        a(f"v_mov_b32 v{ONE+r}, 0x3f803f80")
    a("s_waitcnt lgkmcnt(0)")
    def acc(rt, ct): return ACC + (rt*8 + ct)*4
    def scale_d(rt, ct, dst):
        st = vr(ST2 + 2*rt, 2)
        for hf in range(2):
            r = vr(acc(rt, ct) + 2*hf, 2)
            a(f"v_pk_fma_f32 {r}, {st}, {vr(cs(ct)+2*hf,2)}, {r} op_sel_hi:[0,1,1] neg_lo:[1,0,0] neg_hi:[1,0,0]")
        for hf in range(2):
            r = vr(acc(rt, ct) + 2*hf, 2)
            a(f"v_pk_mul_f32 {r}, {r}, {st} op_sel:[0,1] op_sel_hi:[1,1]")
        for hf in range(2):
            a(f"v_cvt_pk_bf16_f32 v{dst+hf}, v{acc(rt,ct)+2*hf}, v{acc(rt,ct)+2*hf+1}")
    def scale_v(rt, ct, dst):
        c = CSV + ct - 5
        cp = vr(c & ~1, 2); sel = c & 1
        for hf in range(2):
            r = vr(acc(rt, ct) + 2*hf, 2)
            a(f"v_pk_fma_f32 {r}, {vr(MP+4*rt+2*hf,2)}, {cp}, {r} op_sel:[0,{sel},0] op_sel_hi:[1,{sel},1] neg_lo:[1,0,0] neg_hi:[1,0,0]")
        for hf in range(2):
            r = vr(acc(rt, ct) + 2*hf, 2)
            a(f"v_pk_mul_f32 {r}, {r}, {vr(RP+4*rt+2*hf,2)}")
        for hf in range(2):
            a(f"v_cvt_pk_bf16_f32 v{dst+hf}, v{acc(rt,ct)+2*hf}, v{acc(rt,ct)+2*hf+1}")
    def prep(rt):
        k = KP + 6*(rt+1); q = QP + 8*rt
        scale_d(rt, 2, k); scale_d(rt, 3, k+4)
        scale_d(rt, 4, X0+4)
        scale_v(rt, 5, VA + 2*(rt+1)); scale_v(rt, 6, VB + 2*(rt+1)); scale_v(rt, 7, VR + 2*(rt+1))
        for hf in range(2):
            a(f"v_cndmask_b32 v{q+2+hf}, 0, v{X0+4+hf}, s[74:75]")
            a(f"v_cndmask_b32 v{q+4+hf}, 0, v{X0+4+hf}, s[76:77]")
            a(f"v_mov_b32 v{k+2+hf}, v{X0+4+hf}")
        for hf in range(2):
            a(f"v_permlane32_swap_b32 v{X0+4+hf}, v{k+2+hf}")
        scale_d(rt, 0, q); scale_d(rt, 1, q+6)
    prep(2)
    a("s_mul_i32 s63, s40, 3072")
    a(f"v_lshl_add_u32 v{X0+6}, v{L}, 3, s63")
    k = KP + 18
    for n, r in enumerate([k, k+2, k+4, VA+6, VB+6, VR+6]):
        a(f"ds_write_b64 v{X0+6}, {vr(r,2)} offset:{3072 + n*512}")
    prep(1); prep(0)
    a("s_waitcnt lgkmcnt(0)")
    a("s_barrier")
    for n, r in enumerate([KP, KP+2, KP+4, VA, VB, VR]):
        a(f"ds_read_b64 {vr(r,2)}, v{X0+6} offset:{n*512}")
    a(f"v_and_b32 v{X0+7}, 48, v{L}")
    SA = T + 2
    SB = T + 4
    a("s_and_b32 s63, s42, 1")
    a("s_lshl_b32 s63, s63, 1")
    a("s_add_u32 s63, s63, s69")
    a("s_lshl_b32 s63, s63, 4")
    for pz in range(2):
        a(f"v_add_lshl_u32 v{SA+pz}, v{X0+7}, v{MS+pz}, 4")
        a(f"v_add_lshl_u32 v{SB+pz}, s63, v{MS+pz}, 4")
    a("s_lshl_b32 s88, s42, 1")
    a("s_add_u32 s88, s88, s69")
    a("s_lshl_b32 s88, s88, 12")
    a("s_lshr_b32 s89, s42, 1")
    a("s_add_u32 s89, s89, 16")
    a("s_lshl_b32 s89, s89, 12")
    def attn(rt):
        W = ACC + 32*rt
        S1A, S2A, S1B, S2B = W, W+4, W+8, W+12
        kc = KP + 6*(rt+1); kp = KP + 6*rt; q = QP + 8*rt
        b2 = B2
        skip = f"K1_Q_SKIP{rt}"
        a(f"s_cmp_ge_u32 s{70+rt}, 128")
        a(f"s_cbranch_scc1 {skip}")
        if rt == 0:
            a("s_cmp_eq_u32 s68, 0")
            a(f"s_cbranch_scc1 {skip}")
            a("s_waitcnt lgkmcnt(0)")
        if rt == 1:
            b2 = W + 28
            a("s_cmp_eq_u32 s71, 0")
            a("s_cselect_b64 s[84:85], -1, 0")
            for r in range(4):
                a(f"v_cndmask_b32 v{b2+r}, v{B2+r}, v{X0+2}, s[84:85]")
        a(f"v_mfma_f32_16x16x32_bf16 {vr(S1A,4)}, {vr(kc,4)}, {vr(q,4)}, {vr(B1,4)}")
        a(f"v_mfma_f32_16x16x32_bf16 {vr(S2A,4)}, {vr(kp,4)}, {vr(q,4)}, {vr(b2,4)}")
        a(f"v_mfma_f32_16x16x32_bf16 {vr(S1B,4)}, {vr(kc+2,4)}, {vr(q+4,4)}, {vr(B1,4)}")
        a(f"v_mfma_f32_16x16x32_bf16 {vr(S2B,4)}, {vr(kp+2,4)}, {vr(q+4,4)}, {vr(b2,4)}")
        a(f"s_lshr_b32 s63, s{70+rt}, 2")
        a(f"s_mul_i32 s63, s63, {NF*4096}")
        a(f"s_and_b32 s64, s{70+rt}, 3")
        a("s_lshl_b32 s64, s64, 10")
        a("s_add_u32 s63, s63, s64")
        a("s_add_u32 s64, s63, s89")
        a("s_add_u32 s63, s63, s88")
        for r in range(4): a(f"v_max_f32 v{S1A+r}, v{S1A+r}, v{S2A+r}")
        for r in range(4): a(f"v_max_f32 v{S1B+r}, v{S1B+r}, v{S2B+r}")
        mA, mB = W+16, W+18
        a(f"v_max3_f32 v{mA}, v{S1A}, v{S1A+1}, v{S1A+2}")
        a(f"v_max3_f32 v{mB}, v{S1B}, v{S1B+1}, v{S1B+2}")
        a(f"v_max_f32 v{mA}, v{mA}, v{S1A+3}")
        a(f"v_max_f32 v{mB}, v{mB}, v{S1B+3}")
        a(f"v_permlane32_swap_b32 v{mA}, v{mB}")
        a(f"v_max_f32 v{mA}, v{mA}, v{mB}")
        a(f"v_mov_b32 v{mB}, v{mA}")
        a(f"v_permlane16_swap_b32 v{mA}, v{mB}")
        a(f"v_max_f32 v{mA}, v{mA}, v{mB}")
        a(f"v_mul_f32 v{mA}, {f32(-cexp):#x}, v{mA}")
        a(f"v_mov_b32 v{mB}, v{mA}")
        a(f"v_permlane32_swap_b32 v{mA}, v{mB}")
        for (Sx, m) in ((S1A, mA), (S1B, mB)):
            for hf in range(2):
                a(f"v_pk_fma_f32 {vr(Sx+2*hf,2)}, {vr(Sx+2*hf,2)}, s[82:83], {vr(m,2)} op_sel_hi:[1,1,0]")
        for Sx in (S1A, S1B):
            for r in range(4): a(f"v_exp_f32 v{Sx+r}, v{Sx+r}")
        PA, PB = S2A, S2B
        for (Sx, P) in ((S1A, PA), (S1B, PB)):
            for hf in range(2):
                a(f"v_cvt_pk_bf16_f32 v{Sx+hf}, v{Sx+2*hf}, v{Sx+2*hf+1}")
        for (Sx, P) in ((S1A, PA), (S1B, PB)):
            for hf in range(2):
                a(f"v_cndmask_b32 v{P+hf}, 0, v{Sx+hf}, s[80:81]")
                a(f"v_cndmask_b32 v{P+2+hf}, 0, v{Sx+hf}, s[78:79]")
        DA, DB, OA, OB, RA, RB = S1A, S1B, W+16, W+20, W+24, W+28
        a(f"v_mfma_f32_16x16x32_bf16 {vr(DA,4)}, {vr(ONE,4)}, {vr(PA,4)}, 0")
        a(f"v_mfma_f32_16x16x32_bf16 {vr(DB,4)}, {vr(ONE,4)}, {vr(PB,4)}, 0")
        a(f"v_mfma_f32_16x16x32_bf16 {vr(OA,4)}, {vr(VA+2*rt,4)}, {vr(PA,4)}, 0")
        a(f"v_mfma_f32_16x16x32_bf16 {vr(OB,4)}, {vr(VB+2*rt,4)}, {vr(PB,4)}, 0")
        a(f"v_mfma_f32_16x16x32_bf16 {vr(RA,4)}, {vr(VR+2*rt,4)}, {vr(PA,4)}, 0")
        a(f"v_mfma_f32_16x16x32_bf16 {vr(RB,4)}, {vr(VR+2*rt,4)}, {vr(PB,4)}, 0")
        a(f"v_rcp_f32 v{DA}, v{DA}")
        a(f"v_rcp_f32 v{DB}, v{DB}")
        for (O, Dn) in ((OA, DA), (OB, DB), (RA, DA), (RB, DB)):
            for hf in range(2):
                a(f"v_pk_mul_f32 {vr(O+2*hf,2)}, {vr(O+2*hf,2)}, {vr(Dn,2)} op_sel_hi:[1,0]")
        OUT, OUTR = PA, PB
        for hf in range(2):
            a(f"v_cvt_pk_bf16_f32 v{OUT+hf}, v{OA+2*hf}, v{OA+2*hf+1}")
            a(f"v_cvt_pk_bf16_f32 v{OUT+2+hf}, v{OB+2*hf}, v{OB+2*hf+1}")
            a(f"v_cvt_pk_bf16_f32 v{OUTR+hf}, v{RA+2*hf}, v{RA+2*hf+1}")
            a(f"v_cvt_pk_bf16_f32 v{RB+hf}, v{RB+2*hf}, v{RB+2*hf+1}")
        a(f"buffer_store_dwordx4 {vr(OUT,4)}, v{SA+(rt%2)}, s[36:39], s63 offen")
        for hf in range(2):
            a(f"v_permlane16_swap_b32 v{RB+hf}, v{OUTR+2+hf}")
        a("s_mov_b64 exec, 0xffff")
        a(f"buffer_store_dwordx4 {vr(OUTR,4)}, v{SB+(rt%2)}, s[36:39], s64 offen")
        a("s_mov_b64 exec, -1")
        a(f"{skip}:")
    attn(2); attn(1); attn(0)
    a("K1_END:")
    a("s_endpgm")

def gen_k2(a):
    header(a, "k2_kernel")
    a("s_cmp_ge_u32 s2, 256")
    a("s_cbranch_scc1 K2_END")
    kernargs(a)
    L = 228
    a(f"v_and_b32 v{L}, 63, v0")
    a("v_lshrrev_b32 v1, 6, v0")
    a("v_readfirstlane_b32 s40, v1")
    a(f"v_lshlrev_b32 v{L+1}, 4, v{L}")
    a(f"v_add_u32 v{L+2}, 4096, v{L+1}")
    a("s_and_b32 s63, s2, 7")
    a("s_lshr_b32 s64, s2, 3")
    a("s_lshl_b32 s41, s63, 2")
    a("s_and_b32 s65, s64, 3")
    a("s_add_u32 s41, s41, s65")
    a("s_lshr_b32 s42, s64, 2")
    a("s_mul_i32 s43, s40, 9")
    a("s_min_u32 s63, s40, 2")
    a("s_add_u32 s43, s43, s63")
    a(f"s_mul_i32 s44, s41, {NF}")
    a("s_add_u32 s44, s44, s43")
    a("s_lshl_b32 s44, s44, 12")
    a(f"s_mul_i32 s45, s42, {NF}")
    a("s_add_u32 s45, s45, s43")
    a("s_mul_i32 s45, s45, 5120")
    a("s_waitcnt lgkmcnt(0)")
    srd(a, 24, 22, ACT_BYTES, WS_ACT)
    srd(a, 28, 22, W2P_BYTES, WS_W2P)
    srd(a, 32, 4, X_BYTES)
    srd(a, 36, 18, X_BYTES)
    BUF = 80
    def issue(s):
        b = BUF + (s % 4) * 36
        if s == 9:
            a("s_cmp_lt_u32 s40, 2")
            a("s_cselect_b32 s26, s26, 0")
            a("s_cselect_b32 s30, s30, 0")
        for i in range(4):
            a(f"buffer_load_dwordx4 {vr(b+4*i,4)}, v{L+1}, s[24:27], s44 offen offset:{1024*i}")
        for j in range(5):
            if j < 4: a(f"buffer_load_dwordx4 {vr(b+16+4*j,4)}, v{L+1}, s[28:31], s45 offen offset:{1024*j}")
            else: a(f"buffer_load_dwordx4 {vr(b+16+4*j,4)}, v{L+2}, s[28:31], s45 offen")
        a("s_add_u32 s44, s44, 4096")
        a("s_add_u32 s45, s45, 5120")
    for s in range(4): issue(s)
    for s in range(10):
        inflight_after = min(3, 9 - s)
        a(f"s_waitcnt vmcnt({9*inflight_after})")
        b = BUF + (s % 4) * 36
        for i in range(4):
            for j in range(5):
                acc = vr((i*5 + j)*4, 4)
                c = "0" if s == 0 else acc
                a(f"v_mfma_f32_16x16x32_bf16 {acc}, {vr(b+16+4*j,4)}, {vr(b+4*i,4)}, {c}")
        if s + 4 < 10: issue(s + 4)
    a("s_and_b32 s63, s40, 3")
    a("s_lshr_b32 s64, s40, 2")
    a("s_lshl_b32 s65, s41, 2")
    a("s_add_u32 s65, s65, s63")
    a(f"s_mul_i32 s65, s65, {16*1280}")
    a("s_mul_i32 s66, s42, 160")
    a("s_add_u32 s65, s65, s66")
    a("s_lshl_b32 s66, s64, 6")
    a("s_add_u32 s66, s66, s65")
    a(f"v_and_b32 v{L+3}, 15, v{L}")
    a(f"v_mul_u32_u24 v{L+3}, 1280, v{L+3}")
    a(f"v_lshrrev_b32 v{L+4}, 4, v{L}")
    a(f"v_lshl_add_u32 v{L+5}, v{L+4}, 3, v{L+3}")
    a(f"v_lshl_add_u32 v{L+4}, v{L+4}, 4, v{L+3}")
    XR = 236
    a(f"buffer_load_dwordx4 {vr(XR,4)}, v{L+4}, s[32:35], s66 offen")
    a(f"buffer_load_dwordx2 {vr(XR+4,2)}, v{L+5}, s[32:35], s65 offen offset:128")
    a("s_mul_i32 s67, s40, 20480")
    a(f"v_add_u32 v{L+6}, s67, v{L+1}")
    for t in range(20):
        a(f"ds_write_b128 v{L+6}, {vr(4*t,4)} offset:{1024*t}")
    a("s_waitcnt lgkmcnt(0)")
    a("s_barrier")
    a("s_mul_i32 s67, s63, 5120")
    a("s_lshl_b32 s68, s64, 11")
    a("s_add_u32 s68, s68, s67")
    for ww in range(3):
        a(f"s_add_u32 s69, s68, {ww*3*20480}")
        a(f"s_add_u32 s70, s67, {ww*3*20480}")
        a(f"v_add_u32 v{L+6}, s69, v{L+1}")
        a(f"v_add_u32 v{L+7}, s70, v{L+1}")
        for w in range(3*ww, min(8, 3*ww+3)):
            o = (w - 3*ww) * 20480
            a(f"ds_read_b128 {vr(w*12,4)}, v{L+6} offset:{o}")
            a(f"ds_read_b128 {vr(w*12+4,4)}, v{L+6} offset:{o+1024}")
            a(f"ds_read_b128 {vr(w*12+8,4)}, v{L+7} offset:{o+4096}")
    a("s_waitcnt lgkmcnt(0)")
    for step in (48, 24, 12):
        for r in range(0, step, 2):
            a(f"v_pk_add_f32 {vr(r,2)}, {vr(r,2)}, {vr(r+step,2)}")
    a("s_waitcnt vmcnt(0)")
    for i in range(6):
        a(f"v_lshlrev_b32 v{20+2*i}, 16, v{XR+i}")
        a(f"v_and_b32 v{21+2*i}, 0xffff0000, v{XR+i}")
    for i in range(6):
        a(f"v_pk_add_f32 {vr(2*i,2)}, {vr(2*i,2)}, {vr(20+2*i,2)}")
    for i in range(6):
        a(f"v_cvt_pk_bf16_f32 v{40+i}, v{2*i}, v{2*i+1}")
    a(f"buffer_store_dwordx4 v[40:43], v{L+4}, s[36:39], s66 offen")
    a("s_cmp_lg_u32 s64, 0")
    a("s_cbranch_scc1 K2_END")
    a(f"buffer_store_dwordx2 v[44:45], v{L+5}, s[36:39], s65 offen offset:128")
    a("K2_END:")
    a("s_endpgm")

def main():
    a = Asm()
    gen_k0(a); gen_k1(a); gen_k2(a)
    body, n = a.text()
    head = open("cdna_kernels/%s.s.ref" % NAME).read().split("\n")
    head = [l for l in head if l.startswith(";") and "@launch" not in l and "Override" not in l and "grid=ceil" not in l]
    out = "\n".join(head) + "\n"
    out += "; @launch kernel=k0_kernel grid=(256,1,1) block=(512,1,1) lds=24576\n"
    out += "; @launch kernel=k1_kernel grid=(256,1,1) block=(512,1,1) lds=163840\n"
    out += "; @launch kernel=k2_kernel grid=(256,1,1) block=(512,1,1) lds=163840\n"
    out += '.amdgcn_target "amdgcn-amd-amdhsa--gfx950"\n.text\n' + body
    out += '.section .rodata,"a"\n.p2align 6\n' + kd("k0_kernel", 64) + ".p2align 6\n" + kd("k1_kernel", 256) + ".p2align 6\n" + kd("k2_kernel", 256)
    path = sys.argv[1] if len(sys.argv) > 1 else "cdna_kernels/%s.s" % NAME
    open(path, "w").write(out)
    print("wrote", path, "hazard nops:", n, "lines:", out.count("\n"))
main()
```
